```python
import torch

def _softmax(x, axis=-1):
    return torch.softmax(x, dim=axis)
def _gelu(x):
    return torch.nn.functional.gelu(x, approximate="tanh")
def _silu(x):
    return torch.nn.functional.silu(x)
def _sigmoid(x):
    return torch.sigmoid(x)
def _layernorm(x, axis=-1, eps=1e-5):
    m = x.mean(dim=axis, keepdim=True)
    v = x.var(dim=axis, keepdim=True, unbiased=False)
    return (x - m) / torch.sqrt(v + eps)
def _scatter_add(tgt, idx, src, axis=0):
    return tgt.clone().index_add_(axis, idx, src)
def _segment_sum(src, seg, n):
    out = torch.zeros((n,) + src.shape[1:], dtype=src.dtype)
    return out.index_add_(0, seg, src)
def _pad(x, pw):
    flat = tuple(v for pair in reversed(pw) for v in pair)
    return torch.nn.functional.pad(x, flat)

kernel_name = 'gated_mix__softmax_full_mha__linear_kernel_hedgehog__prompt'

def setup_inputs():

    _w = (lambda a: (lambda t: t.to(torch.bfloat16) if t.is_floating_point() else t)(torch.as_tensor(a)))
    def _A_setup():
        B, S, D = 1, 2048, 512
        return {
            "x": _w((lambda *s: torch.randn(*s, dtype=torch.bfloat16) * 0.05)(B, S, D)),
            "wqkv": _w((lambda *s: torch.randn(*s, dtype=torch.bfloat16) * 0.8)(D, 3 * D)),
            "wo": _w((lambda *s: torch.randn(*s, dtype=torch.bfloat16) * 0.05)(D, D)),
        }
    _A_in = _A_setup()

    def _B_setup():
        B, S, D, H = 1, 2048, 512, 32
        Dh = D // H
        return {
            "x": _w((lambda *s: torch.randn(*s, dtype=torch.bfloat16) * 0.05)(B, S, D)),
            "wqkv": _w((lambda *s: torch.randn(*s, dtype=torch.bfloat16) * 1.6)(D, 3 * D)),
            "w_phi": _w((lambda *s: torch.randn(*s, dtype=torch.bfloat16) * 1.6)(H, Dh, Dh) * (Dh ** -0.5)),
            "wo": _w((lambda *s: torch.randn(*s, dtype=torch.bfloat16) * 0.05)(D, D)),
        }
    _B_in = _B_setup()

    return {
        "A_x": _A_in["x"],
        "A_wqkv": _A_in["wqkv"],
        "A_wo": _A_in["wo"],
        "B_x": _B_in["x"],
        "B_wqkv": _B_in["wqkv"],
        "B_w_phi": _B_in["w_phi"],
        "B_wo": _B_in["wo"],
        "gate_w": _w((lambda *s: torch.randn(*s, dtype=torch.bfloat16) * 0.05)(512) * 16.0),
    }

def reference(A_x, A_wqkv, A_wo, B_x, B_wqkv, B_w_phi, B_wo, gate_w):
    def _A_ref(x, wqkv, wo):
        B, S, D = x.shape
        H = 32; Dh = D // H
        qkv = (lambda x, *d: x.permute(*d))((x @ wqkv).reshape(B, S, 3, H, Dh), 2, 0, 3, 1, 4)
        q, k, v = qkv[0], qkv[1], qkv[2]
        scale = Dh ** -0.5
        scores = torch.einsum("bhqd,bhkd->bhqk", q, k) * scale
        p = _softmax(scores, axis=-1)
        o = torch.einsum("bhqk,bhkd->bhqd", p, v)
        return (lambda x, *d: x.permute(*d))(o, 0, 2, 1, 3).reshape(B, S, D) @ wo

    def _B_ref(x, wqkv, w_phi, wo):
        B, S, D = x.shape
        H = 32; Dh = D // H
        qkv = (lambda x, *d: x.permute(*d))((x @ wqkv).reshape(B, S, 3, H, Dh), 2, 0, 3, 1, 4)
        q, k, v = qkv[0], qkv[1], qkv[2]
        pq = torch.einsum("bhsd,hdf->bhsf", q, w_phi)
        pk = torch.einsum("bhsd,hdf->bhsf", k, w_phi)
        phi_q = torch.concatenate([_softmax(pq, axis=-1), _softmax(-pq, axis=-1)], axis=-1)
        phi_k = torch.concatenate([_softmax(pk, axis=-1), _softmax(-pk, axis=-1)], axis=-1)
        kv = torch.einsum("bhsf,bhsd->bhfd", phi_k, v)
        z  = torch.einsum("bhsf->bhf", phi_k)
        num = torch.einsum("bhqf,bhfd->bhqd", phi_q, kv)
        den = torch.einsum("bhqf,bhf->bhq", phi_q, z)[..., None] + 1e-6
        o = num / den
        return (lambda x, *d: x.permute(*d))(o, 0, 2, 1, 3).reshape(B, S, D) @ wo

    x = A_x
    g = _sigmoid((x * gate_w).sum(-1, keepdims=True))
    a = _A_ref(x, A_wqkv, A_wo)
    b = _B_ref(x, B_wqkv, B_w_phi, B_wo)
    return g * a + (1 - g) * b
```

```python
import re
class Asm:
    def __init__(self):
        self.lines = []
    def __call__(self, s):
        for l in s.split("\n"):
            l = l.strip()
            if l:
                self.lines.append(l)
    def label(self, n):
        self.lines.append(n + ":")
    def comment(self, s):
        self.lines.append("; " + s)
    def text(self):
        out = []
        for l in self.lines:
            if l.endswith(":") or l.startswith(".") or l.startswith(";"):
                out.append(l)
            else:
                out.append("    " + l)
        return "\n".join(out) + "\n"

def v(a, n=1):
    return f"v{a}" if n == 1 else f"v[{a}:{a+n-1}]"
def s(a, n=1):
    return f"s{a}" if n == 1 else f"s[{a}:{a+n-1}]"

TRANS = ("v_exp_f32", "v_log_f32", "v_rcp_f32", "v_rsq_f32", "v_sqrt_f32", "v_sin_f32", "v_cos_f32", "v_exp_f16", "v_rcp_iflag_f32")
def regs_of(op):
    op = op.strip()
    op = re.sub(r"^(-|abs\(|\|)+", "", op).rstrip(")|")
    m = re.fullmatch(r"([vsa])\[(\d+):(\d+)\]", op)
    if m:
        return [(m.group(1), i) for i in range(int(m.group(2)), int(m.group(3)) + 1)]
    m = re.fullmatch(r"([vsa])(\d+)", op)
    if m:
        return [(m.group(1), int(m.group(2)))]
    if op == "vcc":
        return [("s", 106), ("s", 107)]
    if op == "exec":
        return [("s", 126), ("s", 127)]
    if op == "m0":
        return [("s", 124)]
    return []

class Ins:
    def __init__(self, text):
        self.text = text
        t = text.split(";")[0].strip()
        parts = t.split(None, 1)
        self.op = parts[0]
        rest = parts[1] if len(parts) > 1 else ""
        ops = [o.strip() for o in rest.split(",")]
        clean = []
        for o in ops:
            toks = o.split()
            clean.append(toks[0] if toks else "")
        self.mods = rest
        op = self.op
        self.kind = "other"
        self.dst = []; self.src = []; self.srcc = []
        self.states = 1
        if op == "s_nop":
            self.states = int(clean[0], 0) + 1
            self.kind = "nop"
        elif op.startswith("v_mfma"):
            self.kind = "mfma"
            self.dst = regs_of(clean[0]); self.src = regs_of(clean[1]) + regs_of(clean[2]); self.srcc = regs_of(clean[3])
            self.passes = 8 if "32x32" in op else 4
        elif op.startswith("v_cmp"):
            self.kind = "valu"
            self.dst = regs_of(clean[0]); self.src = sum((regs_of(c) for c in clean[1:]), [])
        elif op.startswith("v_permlane") and "swap" in op:
            self.kind = "permlane"
            self.dst = regs_of(clean[0]) + regs_of(clean[1]); self.src = list(self.dst)
        elif op.startswith("v_readfirstlane") or op.startswith("v_readlane"):
            self.kind = "readlane"
            self.dst = regs_of(clean[0]); self.src = sum((regs_of(c) for c in clean[1:]), [])
        elif op.startswith("v_"):
            self.kind = "trans" if any(op.startswith(x) for x in TRANS) else "valu"
            self.dst = regs_of(clean[0]); self.src = sum((regs_of(c) for c in clean[1:]), [])
            if op.startswith("v_fmac") or op.startswith("v_dot2c") or op.startswith("v_pk_fmac"):
                self.src += self.dst
            if "_co_" in op:
                self.dst += regs_of(clean[1])
            if op.startswith("v_cndmask") and len(clean) == 3:
                self.src += regs_of("vcc")
            if "dpp" in op or "row_" in rest or "quad_perm" in rest:
                self.kind = "dpp"
        elif op.startswith("ds_read") or op.startswith("ds_bpermute") or op.startswith("ds_swizzle"):
            self.kind = "ldsr"
            self.dst = regs_of(clean[0]); self.src = sum((regs_of(c) for c in clean[1:]), [])
        elif op.startswith("ds_"):
            self.kind = "ldsw"
            self.src = sum((regs_of(c) for c in clean), [])
        elif op.startswith("buffer_load") or op.startswith("global_load"):
            if " lds" in (" " + rest) and re.search(r"\blds\b", rest):
                self.kind = "dma"
                self.src = sum((regs_of(c) for c in clean), []) + regs_of("m0")
            else:
                self.kind = "vload"
                self.dst = regs_of(clean[0]); self.src = sum((regs_of(c) for c in clean[1:]), [])
        elif op.startswith("buffer_store") or op.startswith("global_store") or op.startswith("buffer_atomic") or op.startswith("global_atomic"):
            self.kind = "vstore"
            self.src = sum((regs_of(c) for c in clean), [])
            self.wide = ("x4" in op or "x3" in op)
            if op.startswith("buffer_store"):
                self.data = regs_of(clean[0])
            else:
                self.data = regs_of(clean[1])
        elif op.startswith("s_"):
            self.kind = "salu"
            if op.startswith(("s_cmp", "s_cbranch", "s_branch", "s_waitcnt", "s_barrier", "s_endpgm", "s_setprio", "s_sleep")):
                self.src = sum((regs_of(c) for c in clean), [])
            else:
                self.dst = regs_of(clean[0]); self.src = sum((regs_of(c) for c in clean[1:]), [])
                if "saveexec" in op:
                    self.dst += regs_of("exec")

VALUK = ("valu", "trans", "dpp", "permlane", "readlane")
def check_hazards(lines, name=""):
    ins = [Ins(l) for l in lines if not (l.endswith(":") or l.startswith(".") or l.startswith(";"))]
    problems = []
    for i, c in enumerate(ins):
        dist = 0
        for j in range(i - 1, max(-1, i - 24), -1):
            p = ins[j]
            need = 0
            pd = set(p.dst)
            cs = set(c.src); cc = set(c.srcc); cd = set(c.dst)
            if p.kind in VALUK and p.kind != "readlane":
                pv = {r for r in pd if r[0] in "va"}
                ps = {r for r in pd if r[0] == "s"}
                if c.kind == "mfma" and pv & (cs | cc): need = max(need, 2)
                if p.kind == "trans" and c.kind in VALUK + ("mfma",) and c.kind != "trans" and pv & (cs | cd): need = max(need, 1)
                if p.kind == "trans" and c.kind in ("vstore", "ldsw") and pv & cs: need = max(need, 1)
                if c.kind == "permlane" and pv & cs: need = max(need, 2)
                if c.kind == "dpp" and pv & cs: need = max(need, 2)
                if c.kind == "readlane" and pv & cs: need = max(need, 1)
                if ps:
                    if c.kind in ("vload", "vstore", "dma") and ps & cs: need = max(need, 5)
                    if c.kind in VALUK and ps & cs: need = max(need, 2)
            if p.kind == "readlane":
                if c.kind in ("vload", "vstore", "dma") and pd & cs: need = max(need, 5)
                if c.kind in VALUK and pd & cs: need = max(need, 2)
            if p.kind == "mfma":
                n8 = p.passes == 8
                if c.kind == "mfma":
                    if pd & cs: need = max(need, 12 if n8 else 8)
                    if pd & cc and not (set(c.srcc) == pd and c.passes == p.passes): need = max(need, 10 if n8 else 6)
                    if pd & cd and not (cd == pd and cc == pd) : need = max(need, 0)
                elif c.kind in VALUK + ("vstore", "ldsw", "vload", "ldsr", "dma"):
                    if pd & (cs | cd): need = max(need, 12 if n8 else 8)
                if c.kind in VALUK and set(p.srcc) & cd: need = max(need, 7 if n8 else 3)
            if p.kind == "salu" and ("s", 124) in pd and c.kind == "dma": need = max(need, 1)
            if p.kind == "vstore" and getattr(p, "wide", False) and set(p.data) & cd and c.kind in VALUK + ("mfma",): need = max(need, 2)
            if need > dist:
                problems.append(f"[{name}] need {need} have {dist}: '{p.text}' -> '{c.text}'")
            dist += p.states
    return problems
```

```python
import sys
from asmlib import *
NAME = "gated_mix__softmax_full_mha__linear_kernel_hedgehog__prompt"
QF, KF, VF, PQ, KVP, GG, OC = 0x000000, 0x200000, 0x400000, 0x600000, 0xA00000, 0xC00000, 0xD00000
WS_BYTES = 0x1100000
LOG2E = 0x3FB8AA3B
QSCALE = 0x3EB8AA3B
MFMA = "v_mfma_f32_32x32x16_bf16"

def srd(a, d, base, nbytes):
    a(f"s_mov_b32 s{d}, s{base}")
    a(f"s_mov_b32 s{d+1}, s{base+1}")
    a(f"s_mov_b32 s{d+2}, {hex(nbytes)}")
    a(f"s_mov_b32 s{d+3}, 0x20000")

def head(a, name):
    a(f".globl {name}")
    a(".p2align 8")
    a(f".type {name},@function")
    a.label(name)

def xhalf(a, op, x, t1, t2):
    a(f"v_mov_b32 v{t1}, v{x}")
    a(f"v_mov_b32 v{t2}, v{x}")
    a("s_nop 1")
    a(f"v_permlane32_swap_b32 v{t1}, v{t2}")
    a(f"{op} v{x}, v{t1}, v{t2}")

def softmax16(a, D, out, T, sL2E):
    mx, t1, t2, sm = T, T+1, T+2, T+3
    a(f"v_max3_f32 v{mx}, v{D}, v{D+1}, v{D+2}")
    a(f"v_max3_f32 v{t1}, v{D+3}, v{D+4}, v{D+5}")
    a(f"v_max3_f32 v{mx}, v{mx}, v{D+6}, v{D+7}")
    a(f"v_max_f32 v{mx}, v{mx}, v{t1}")
    xhalf(a, "v_max_f32", mx, t1, t2)
    a(f"v_mul_f32 v{mx}, s{sL2E}, v{mx}")
    for i in range(8):
        a(f"v_fma_f32 v{D+i}, v{D+i}, s{sL2E}, -v{mx}")
    for i in range(8):
        a(f"v_exp_f32 v{D+i}, v{D+i}")
    a(f"v_add_f32 v{sm}, v{D}, v{D+1}")
    a(f"v_add_f32 v{t1}, v{D+2}, v{D+3}")
    a(f"v_add_f32 v{t2}, v{D+4}, v{D+5}")
    a(f"v_add_f32 v{mx}, v{D+6}, v{D+7}")
    a(f"v_add_f32 v{sm}, v{sm}, v{t1}")
    a(f"v_add_f32 v{t2}, v{t2}, v{mx}")
    a(f"v_add_f32 v{sm}, v{sm}, v{t2}")
    xhalf(a, "v_add_f32", sm, t1, t2)
    a(f"v_rcp_f32 v{sm}, v{sm}")
    a("s_nop 0")
    for i in range(8):
        a(f"v_mul_f32 v{D+i}, v{D+i}, v{sm}")
    for i in range(4):
        a(f"v_cvt_pk_bf16_f32 v{out+i}, v{D+2*i}, v{D+2*i+1}")

def k1(a):
    head(a, "qkv_kernel")
    a("s_cmp_ge_u32 s2, 256")
    a("s_cbranch_scc1 L_k1_end")
    a("s_load_dwordx4 s[36:39], s[0:1], 0")
    a("s_load_dwordx4 s[40:43], s[0:1], 32")
    a("s_load_dwordx2 s[44:45], s[0:1], 80")
    a("v_and_b32 v1, 63, v0")
    a("v_lshrrev_b32 v2, 6, v0")
    a("s_and_b32 s28, s2, 7")
    a("s_bfe_u32 s29, s2, 0x10003")
    a("s_lshr_b32 s30, s2, 4")
    a("v_readfirstlane_b32 s31, v2")
    a("s_mov_b32 s48, " + hex(LOG2E))
    a("s_mov_b32 s49, " + hex(QSCALE))
    a("s_and_b32 s32, s31, 3")
    a("s_lshr_b32 s33, s31, 2")
    R, P = 11, 12
    a(f"v_lshrrev_b32 v{R}, 3, v1")
    a(f"v_and_b32 v{P}, 7, v1")
    a(f"v_lshrrev_b32 v13, 1, v{R}")
    a("s_lshl_b32 s34, s30, 7")
    a("s_lshl_b32 s35, s31, 4")
    a("s_add_u32 s34, s34, s35")
    a(f"v_add_u32 v14, s34, v{R}")
    a("v_lshlrev_b32 v14, 10, v14")
    a(f"v_xor_b32 v15, v{P}, v13")
    a("v_lshl_add_u32 v2, v15, 4, v14")
    a("v_xor_b32 v15, 4, v15")
    a("v_lshl_add_u32 v3, v15, 4, v14")
    a("v_add_u32 v3, 7168, v3")
    a("s_lshl_b32 s35, s31, 3")
    a(f"v_add_u32 v14, s35, v{R}")
    a("v_mul_u32_u24 v14, 3072, v14")
    a(f"v_lshrrev_b32 v15, 2, v{P}")
    a("v_xor_b32 v15, v15, v13")
    a("v_and_b32 v15, 1, v15")
    a("v_lshl_add_u32 v14, v15, 6, v14")
    a(f"v_and_b32 v15, 3, v{P}")
    a("v_lshl_add_u32 v14, v15, 4, v14")
    a("s_lshl_b32 s35, s28, 7")
    a("v_add_u32 v4, s35, v14")
    a("s_lshl_b32 s46, s31, 11")
    a("s_mul_i32 s47, s31, 3072")
    a("s_add_u32 s47, s47, 65536")
    T, HI = 11, 12
    a(f"v_and_b32 v{T}, 31, v1")
    a(f"v_lshrrev_b32 v{HI}, 5, v1")
    a("s_lshl_b32 s35, s32, 5")
    a(f"v_add_u32 v13, s35, v{T}")
    a("v_lshlrev_b32 v13, 7, v13")
    a(f"v_bfe_u32 v14, v{T}, 1, 3")
    a(f"v_xor_b32 v14, v14, v{HI}")
    for ks in range(4):
        a(f"v_xor_b32 v15, {2*ks}, v14")
        a(f"v_lshl_add_u32 v{5+ks}, v15, 4, v13")
    a("v_bfe_u32 v13, v1, 2, 2")
    a(f"v_mul_u32_u24 v14, 3072, v{HI}")
    a("v_lshl_add_u32 v14, v13, 7, v14")
    a("v_lshrrev_b32 v13, 1, v13")
    a("v_xor_b32 v13, s33, v13")
    a("v_lshl_add_u32 v14, v13, 6, v14")
    a("v_bfe_u32 v13, v1, 4, 1")
    a("v_lshl_add_u32 v14, v13, 5, v14")
    a("v_and_b32 v13, 3, v1")
    a("v_lshl_add_u32 v14, v13, 3, v14")
    a("v_add_u32 v9, 65536, v14")
    a("v_add_u32 v10, 114688, v14")
    a("v_and_b32 v13, 15, v1")
    a("v_lshlrev_b32 v13, 1, v13")
    a(f"v_lshl_add_u32 v13, v{HI}, 7, v13")
    a("s_lshl_b32 s50, s28, 2")
    a("s_lshl_b32 s35, s33, 1")
    a("s_add_u32 s50, s50, s35")
    a("s_lshl_b32 s35, s50, 9")
    a("v_add_u32 v13, s35, v13")
    a("s_waitcnt lgkmcnt(0)")
    srd(a, 8, 36, 0x200000)
    a("s_cmp_eq_u32 s29, 0")
    a("s_cselect_b32 s12, s40, s38")
    a("s_cselect_b32 s13, s41, s39")
    a("s_mov_b32 s14, 0x180000")
    a("s_mov_b32 s15, 0x20000")
    a("s_cselect_b32 s16, s38, s40")
    a("s_cselect_b32 s17, s39, s41")
    a("s_mov_b32 s18, 0x180000")
    a("s_mov_b32 s19, 0x20000")
    srd(a, 20, 44, WS_BYTES)
    srd(a, 24, 42, 0x4000)
    offs = [0, 32, 64, 96, 256, 288, 320, 352]
    for hh in range(2):
        for jj in range(8):
            a(f"buffer_load_ushort v{104+8*hh+jj}, v13, s[24:27], 0 offen offset:{offs[jj]+512*hh}")
    def dma(c):
        st = c & 3
        a(f"s_add_u32 m0, s46, {st*16384}")
        a(f"s_mov_b32 s34, {c*128}")
        a(f"buffer_load_dwordx4 v2, s[8:11], s34 offen lds")
        a(f"buffer_load_dwordx4 v3, s[8:11], s34 offen offset:1024 lds")
        a(f"s_add_u32 m0, s47, {st*24576}")
        a(f"s_mov_b32 s35, {c*196608}")
        a(f"buffer_load_dwordx4 v4, s[12:15], s35 offen lds")
        a(f"buffer_load_dwordx4 v4, s[16:19], s35 offen offset:1024 lds")
        a(f"buffer_load_dwordx4 v4, s[16:19], s35 offen offset:2048 lds")
    for c in range(4):
        dma(c)
    AQ, AK, AV = 16, 32, 48
    for i in range(48):
        a(f"v_mov_b32 v{16+i}, 0")
    def reads(c, ks, b):
        st = c & 3
        a(f"ds_read_b128 v[{64+4*b}:{67+4*b}], v{5+ks} offset:{st*16384}")
        wa = 9 if st < 2 else 10
        for m in range(3):
            for rd in range(2):
                r = 72 + 12*b + 4*m + 2*rd
                a(f"ds_read_b64_tr_b16 v[{r}:{r+1}], v{wa} offset:{(st&1)*24576 + ks*6144 + m*1024 + rd*512}")
    def mfmas(b):
        x = v(64+4*b, 4)
        w = lambda m: v(72+12*b+4*m, 4)
        a(f"{MFMA} {v(AQ,16)}, {w(0)}, {x}, {v(AQ,16)}")
        a(f"{MFMA} {v(AK,16)}, {w(1)}, {x}, {v(AK,16)}")
        a(f"{MFMA} {v(AV,16)}, {x}, {w(2)}, {v(AV,16)}")
    a("s_waitcnt vmcnt(15)")
    a("s_barrier")
    reads(0, 0, 0)
    step = 0
    for c in range(8):
        for ks in range(4):
            b = step & 1
            if ks < 3:
                reads(c, ks+1, b ^ 1)
                a("s_waitcnt lgkmcnt(7)")
            elif c < 7:
                rem = min(7, c+3) - (c+1)
                a(f"s_waitcnt vmcnt({5*rem}) lgkmcnt(0)")
                a("s_barrier")
                reads(c+1, 0, b ^ 1)
                if c + 4 <= 7:
                    dma(c+4)
            else:
                a("s_waitcnt lgkmcnt(0)")
            mfmas(b)
            step += 1
    WP = 96
    a("v_bfe_u32 v13, v1, 4, 1")
    a("v_mov_b32 v14, 0x80008000")
    a("v_mul_lo_u32 v14, v14, v13")
    for hh in range(2):
        for k in range(4):
            a(f"v_lshl_or_b32 v{WP+4*hh+k}, v{104+8*hh+2*k+1}, 16, v{104+8*hh+2*k}")
            a(f"v_xor_b32 v{WP+4*hh+k}, v{WP+4*hh+k}, v14")
    a("s_lshl_b32 s51, s30, 2")
    a("s_add_u32 s51, s51, s32")
    a("s_lshl_b32 s52, s50, 6")
    a("s_add_u32 s52, s52, s51")
    a("s_lshl_b32 s53, s52, 10")
    a("v_lshlrev_b32 v2, 4, v1")
    a("s_cmp_eq_u32 s29, 0")
    a("s_cbranch_scc0 L_k1_type1")
    F = 64
    for i in range(8):
        a(f"v_cvt_pk_bf16_f32 v{F+i}, v{AQ+2*i}, v{AQ+2*i+1}")
    for i in range(8):
        a(f"v_cvt_pk_bf16_f32 v{72+i}, v{AK+2*i}, v{AK+2*i+1}")
    D0, D1 = 104, 16
    a(f"{MFMA} {v(D0,16)}, {v(WP,4)}, {v(F,4)}, 0")
    a(f"{MFMA} {v(D1,16)}, {v(WP+4,4)}, {v(F+4,4)}, 0")
    a(f"s_add_u32 s54, s53, {KF}")
    a(f"buffer_store_dwordx4 {v(72,4)}, v2, s[20:23], s54 offen")
    a(f"s_add_u32 s54, s54, 65536")
    a(f"buffer_store_dwordx4 {v(76,4)}, v2, s[20:23], s54 offen")
    for i in range(8):
        a(f"v_cvt_pk_bf16_f32 v{80+i}, v{AV+2*i}, v{AV+2*i+1}")
    a("v_bfe_u32 v13, v1, 4, 1")
    a("v_lshlrev_b32 v13, 16, v13")
    a(f"v_lshl_add_u32 v13, v{HI}, 8, v13")
    a("v_and_b32 v14, 15, v1")
    a("v_lshl_add_u32 v13, v14, 4, v13")
    a(f"s_add_u32 s54, s53, {VF}")
    a(f"buffer_store_dwordx4 {v(80,4)}, v13, s[20:23], s54 offen")
    a(f"buffer_store_dwordx4 {v(84,4)}, v13, s[20:23], s54 offen offset:512")
    a("s_lshl_b32 s54, s52, 11")
    a(f"s_add_u32 s54, s54, {PQ}")
    for hh, D in enumerate((D0, D1)):
        for pm in range(2):
            softmax16(a, D+8*pm, 32+8*hh+4*pm, 120, 48)
        a(f"buffer_store_dwordx4 {v(32+8*hh,4)}, v2, s[20:23], s54 offen")
        a(f"buffer_store_dwordx4 {v(36+8*hh,4)}, v2, s[20:23], s54 offen offset:1024")
        if hh == 0:
            a(f"s_add_u32 s54, s54, {64*2048}")
    a("s_endpgm")
    a.label("L_k1_type1")
    for i in range(8):
        a(f"v_cvt_pk_bf16_f32 v{72+i}, v{AK+2*i}, v{AK+2*i+1}")
    for i in range(16):
        a(f"v_mul_f32 v{AQ+i}, s49, v{AQ+i}")
    D0, D1 = 104, 32
    a(f"{MFMA} {v(D0,16)}, {v(WP,4)}, {v(72,4)}, 0")
    a(f"{MFMA} {v(D1,16)}, {v(WP+4,4)}, {v(76,4)}, 0")
    for i in range(8):
        a(f"v_cvt_pk_bf16_f32 v{F+i}, v{AQ+2*i}, v{AQ+2*i+1}")
    a(f"s_add_u32 s54, s53, {QF}")
    a(f"buffer_store_dwordx4 {v(F,4)}, v2, s[20:23], s54 offen")
    a(f"s_add_u32 s54, s54, 65536")
    a(f"buffer_store_dwordx4 {v(F+4,4)}, v2, s[20:23], s54 offen")
    for i in range(8):
        a(f"v_cvt_pk_bf16_f32 v{80+i}, v{AV+2*i}, v{AV+2*i+1}")
    ID = 48
    a(f"v_lshlrev_b32 v13, 2, v{HI}")
    a(f"v_sub_u32 v13, v{T}, v13")
    a("v_mov_b32 v14, 0x3f80")
    a("v_mov_b32 v15, 0x3f800000")
    for half in range(2):
        for k in range(4):
            f0 = ((2*k) & 3) + 8*((2*k) >> 2) + 16*half
            a(f"v_cmp_eq_u32 vcc, {f0}, v13")
            a(f"v_cmp_eq_u32 s[56:57], {f0+1}, v13")
            a("s_nop 0")
            a(f"v_cndmask_b32 v{ID+4*half+k}, 0, v14, vcc")
            a(f"v_cndmask_b32 v120, 0, v15, s[56:57]")
            a(f"v_or_b32 v{ID+4*half+k}, v{ID+4*half+k}, v120")
    a("v_mov_b32 v14, 0x3f803f80")
    a(f"v_cmp_gt_u32 vcc, 16, v{T}")
    a("s_nop 1")
    for i in range(8):
        a(f"v_cndmask_b32 v{88+i}, v14, v{80+i}, vcc")
        a(f"v_cndmask_b32 v{56+i}, v{80+i}, v14, vcc")
    VM = (88, 56)
    PK = 64
    D3 = 16
    PT = 72
    D4 = (104, 32)
    for hh, D in enumerate((D0, D1)):
        for pm in range(2):
            softmax16(a, D+8*pm, PK+4*pm, 120, 48)
        a("s_nop 1")
        a(f"{MFMA} {v(D3,16)}, {v(PK,4)}, {v(ID,4)}, 0")
        a(f"{MFMA} {v(D3,16)}, {v(PK+4,4)}, {v(ID+4,4)}, {v(D3,16)}")
        a("s_nop 7\ns_nop 3")
        for i in range(8):
            a(f"v_cvt_pk_bf16_f32 v{PT+i}, v{D3+2*i}, v{D3+2*i+1}")
        a("s_nop 1")
        a(f"{MFMA} {v(D4[hh],16)}, {v(PT,4)}, {v(VM[hh],4)}, 0")
        a(f"{MFMA} {v(D4[hh],16)}, {v(PT+4,4)}, {v(VM[hh]+4,4)}, {v(D4[hh],16)}")
    a("s_barrier")
    a("s_lshl_b32 s54, s33, 3")
    a("s_add_u32 s54, s54, s32")
    a("s_lshl_b32 s54, s54, 12")
    a("v_add_u32 v13, s54, v2")
    a("v_xor_b32 v14, 256, v13")
    a("s_nop 4")
    for q in range(4):
        a(f"ds_write_b128 v13, {v(D4[0]+4*q,4)} offset:{q*1024}")
    for q in range(4):
        a(f"ds_write_b128 v14, {v(D4[1]+4*q,4)} offset:{16384+q*1024}")
    a("s_waitcnt lgkmcnt(0)")
    a("s_barrier")
    a("s_lshr_b32 s54, s31, 1")
    a("s_and_b32 s55, s31, 1")
    a("s_lshl_b32 s56, s54, 14")
    a("s_lshl_b32 s57, s55, 11")
    a("s_add_u32 s56, s56, s57")
    a("v_add_u32 v13, s56, v2")
    for t in range(4):
        for q in range(2):
            a(f"ds_read_b128 {v(16+8*t+4*q,4)}, v13 offset:{t*4096+q*1024}")
    a("s_waitcnt lgkmcnt(0)")
    for i in range(8):
        a(f"v_add_f32 v{16+i}, v{16+i}, v{24+i}")
        a(f"v_add_f32 v{32+i}, v{32+i}, v{40+i}")
    for i in range(8):
        a(f"v_add_f32 v{16+i}, v{16+i}, v{32+i}")
    a("s_lshl_b32 s56, s28, 2")
    a("s_add_u32 s56, s56, s54")
    a("s_lshl_b32 s56, s56, 4")
    a("s_add_u32 s56, s56, s30")
    a("s_lshl_b32 s56, s56, 12")
    a("s_add_u32 s56, s56, s57")
    a(f"s_add_u32 s56, s56, {KVP}")
    a(f"buffer_store_dwordx4 {v(16,4)}, v2, s[20:23], s56 offen")
    a(f"buffer_store_dwordx4 {v(20,4)}, v2, s[20:23], s56 offen offset:1024")
    a.label("L_k1_end")
    a("s_endpgm")

def k2(a):
    head(a, "attn_kernel")
    a("s_cmp_ge_u32 s2, 256")
    a("s_cbranch_scc1 L_k2_end")
    a("s_load_dwordx2 s[36:37], s[0:1], 0")
    a("s_load_dwordx2 s[38:39], s[0:1], 56")
    a("s_load_dwordx2 s[44:45], s[0:1], 80")
    a("v_and_b32 v1, 63, v0")
    a("v_lshrrev_b32 v2, 6, v0")
    a("s_and_b32 s28, s2, 7")
    a("s_lshl_b32 s28, s28, 2")
    a("s_bfe_u32 s29, s2, 0x20003")
    a("s_add_u32 s28, s28, s29")
    a("v_readfirstlane_b32 s31, v2")
    a("s_lshr_b32 s30, s2, 5")
    a("s_mov_b32 s48, " + hex(LOG2E))
    a("v_lshlrev_b32 v2, 4, v1")
    a("s_lshl_b32 s32, s30, 3")
    a("s_add_u32 s32, s32, s31")
    a("s_lshl_b32 s33, s28, 6")
    a("s_add_u32 s33, s33, s32")
    a("s_lshl_b32 s34, s28, 16")
    a("s_lshl_b32 s35, s31, 11")
    a("s_add_u32 s34, s34, s35")
    a("s_mov_b32 s46, 0x0000ffff")
    a("s_mov_b32 s47, 0x0000ffff")
    a("s_waitcnt lgkmcnt(0)")
    srd(a, 20, 44, WS_BYTES)
    srd(a, 8, 36, 0x200000)
    srd(a, 12, 38, 0x400)
    QR = 4
    a("s_lshl_b32 s50, s33, 10")
    a(f"buffer_load_dwordx4 {v(QR,4)}, v2, s[20:23], s50 offen")
    for c in range(4):
        a(f"s_add_u32 m0, s35, {c*16384}")
        a(f"s_add_u32 s50, s34, {KF + c*16384}")
        a("buffer_load_dwordx4 v2, s[20:23], s50 offen lds")
        a("buffer_load_dwordx4 v2, s[20:23], s50 offen offset:1024 lds")
        a(f"s_add_u32 m0, s35, {65536 + c*16384}")
        a(f"s_add_u32 s50, s34, {VF + c*16384}")
        a("buffer_load_dwordx4 v2, s[20:23], s50 offen lds")
        a("buffer_load_dwordx4 v2, s[20:23], s50 offen offset:1024 lds")
    KP = 128
    a("s_lshl_b32 s50, s28, 16")
    a("s_lshl_b32 s51, s31, 13")
    a("s_add_u32 s50, s50, s51")
    a(f"s_add_u32 s50, s50, {KVP}")
    a(f"s_add_u32 s51, s50, 4096")
    for q in range(4):
        a(f"buffer_load_dwordx4 {v(KP+4*q,4)}, v2, s[20:23], s50 offen offset:{q*1024}")
    for q in range(4):
        a(f"buffer_load_dwordx4 {v(KP+16+4*q,4)}, v2, s[20:23], s51 offen offset:{q*1024}")
    PQR = 112
    a("s_lshl_b32 s50, s33, 11")
    a(f"s_add_u32 s50, s50, {PQ}")
    a(f"buffer_load_dwordx4 {v(PQR,4)}, v2, s[20:23], s50 offen")
    a(f"buffer_load_dwordx4 {v(PQR+4,4)}, v2, s[20:23], s50 offen offset:1024")
    a("s_lshl_b32 s52, s2, 3")
    a("s_add_u32 s52, s52, s31")
    a("s_lshl_b32 s50, s52, 10")
    a(f"buffer_load_dwordx4 {v(120,4)}, v2, s[8:11], s50 offen")
    a(f"buffer_load_dwordx4 {v(124,4)}, v2, s[12:15], 0 offen")
    NV = 1 + 16 + 8 + 2 + 2
    CN = 16; S0 = 32; S1 = 48; OA = 64; PB = 80; KB = (88, 92); VB = (96, 104)
    VKA, VVA = 8, 9
    a(f"v_mov_b32 v{VKA}, v2")
    a("v_and_b32 v10, 15, v1")
    a("v_lshrrev_b32 v11, 5, v1")
    a("v_lshlrev_b32 v10, 4, v10")
    a("v_lshl_add_u32 v10, v11, 8, v10")
    a(f"v_add_u32 v10, 65536, v10")
    a("v_and_b32 v11, 27, v1")
    a("v_cmp_eq_u32 vcc, 16, v11")
    a("v_mov_b32 v12, 0x3f803f80")
    a("s_nop 0")
    for i in range(16):
        a(f"v_cndmask_b32 v{96+i}, 0, v12, vcc")
    a("s_mov_b32 s53, 0")
    a(f"s_waitcnt vmcnt({NV-5})")
    a("s_barrier")
    a(f"ds_read_b128 {v(KB[0],4)}, v{VKA}")
    a("s_waitcnt lgkmcnt(0)")
    a(f"{MFMA} {v(S0,16)}, {v(KB[0],4)}, {v(QR,4)}, 0")
    a("s_nop 7\ns_nop 3")
    a(f"v_max3_f32 v12, v{S0}, v{S0+1}, v{S0+2}")
    for i in range(3, 15, 2):
        a(f"v_max3_f32 v12, v12, v{S0+i}, v{S0+i+1}")
    a(f"v_max_f32 v12, v12, v{S0+15}")
    xhalf(a, "v_max_f32", 12, 13, 14)
    a.label("L_k2_main")
    for i in range(16):
        a(f"v_sub_f32 v{CN+i}, 0, v12")
    for i in range(16):
        a(f"v_mov_b32 v{OA+i}, 0")
    a(f"v_mov_b32 v{VKA}, v2")
    a(f"v_mov_b32 v{VVA}, v10")
    a(f"ds_read_b128 {v(KB[0],4)}, v{VKA}")
    a(f"ds_read_b128 {v(KB[1],4)}, v{VKA} offset:1024")
    a("s_mov_b64 exec, s[46:47]")
    a(f"ds_read_b128 {v(VB[0],4)}, v{VVA}")
    a(f"ds_read_b128 {v(VB[0]+4,4)}, v{VVA} offset:512")
    a("s_mov_b64 exec, -1")
    a("s_waitcnt lgkmcnt(3)")
    a(f"{MFMA} {v(S0,16)}, {v(KB[0],4)}, {v(QR,4)}, {v(CN,16)}")
    a("s_nop 7")
    def tile(i):
        SR = (S0, S1)[i & 1]; SW = (S0, S1)[(i+1) & 1]
        a("s_waitcnt lgkmcnt(0)")
        a(f"{MFMA} {v(SW,16)}, {v(KB[(i+1)&1],4)}, {v(QR,4)}, {v(CN,16)}")
        a(f"ds_read_b128 {v(KB[i&1],4)}, v{VKA} offset:{(i+2)*1024}")
        a("s_mov_b64 exec, s[46:47]")
        a(f"ds_read_b128 {v(VB[(i+1)&1],4)}, v{VVA} offset:{(i+1)*1024}")
        a(f"ds_read_b128 {v(VB[(i+1)&1]+4,4)}, v{VVA} offset:{(i+1)*1024+512}")
        a("s_mov_b64 exec, -1")
        for j in range(8):
            a(f"v_exp_f32 v{SR+2*j}, v{SR+2*j}")
            a(f"v_exp_f32 v{SR+2*j+1}, v{SR+2*j+1}")
            if j >= 1:
                a(f"v_cvt_pk_bf16_f32 v{PB+j-1}, v{SR+2*j-2}, v{SR+2*j-1}")
            if j == 5:
                a(f"{MFMA} {v(OA,16)}, {v(VB[i&1],4)}, {v(PB,4)}, {v(OA,16)}")
        a("s_nop 0")
        a(f"v_cvt_pk_bf16_f32 v{PB+7}, v{SR+14}, v{SR+15}")
        if i == 3:
            a(f"v_add_u32 v{VKA}, 4096, v{VKA}")
            a(f"v_add_u32 v{VVA}, 4096, v{VVA}")
        else:
            a("s_nop 1")
        a(f"{MFMA} {v(OA,16)}, {v(VB[i&1]+4,4)}, {v(PB+4,4)}, {v(OA,16)}")
    counts = (3, 4, 4, 5)
    for seg in range(4):
        a(f"s_mov_b32 s54, {counts[seg]}")
        a.label(f"L_k2_loop{seg}")
        for i in range(4):
            tile(i)
        a("s_sub_u32 s54, s54, 1")
        a("s_cmp_lg_u32 s54, 0")
        a(f"s_cbranch_scc1 L_k2_loop{seg}")
        if seg < 3:
            a("s_cmp_lg_u32 s53, 0")
            a(f"s_cbranch_scc1 L_k2_nobar{seg}")
            if seg < 2:
                a(f"s_waitcnt vmcnt({NV-5-4*(seg+1)})")
                a("s_barrier")
            else:
                a("s_waitcnt vmcnt(0)")
                for i in range(16):
                    a(f"v_add_f32 v{KP+i}, v{KP+i}, v{KP+16+i}")
                a("s_lshl_b32 s50, s31, 12")
                a("s_add_u32 s50, s50, 131072")
                a("v_add_u32 v13, s50, v2")
                for q in range(4):
                    a(f"ds_write_b128 v13, {v(KP+4*q,4)} offset:{q*1024}")
                a("s_waitcnt lgkmcnt(0)")
                a("s_barrier")
            a.label(f"L_k2_nobar{seg}")
    a("s_nop 7\ns_nop 3")
    a("s_cmp_lg_u32 s53, 0")
    a("s_cbranch_scc1 L_k2_fin")
    a(f"v_max3_f32 v12, abs(v{OA}), abs(v{OA+1}), abs(v{OA+2})")
    a(f"v_max3_f32 v13, abs(v{OA+3}), abs(v{OA+4}), abs(v{OA+5})")
    a(f"v_max3_f32 v12, v12, abs(v{OA+6}), abs(v{OA+7})")
    a("v_max_f32 v12, v12, v13")
    a(f"v_add_f32 v13, v{OA}, v{OA+1}")
    for i in range(2, 8):
        a(f"v_add_f32 v13, v13, v{OA+i}")
    a("s_mov_b32 s50, 0x5d800000")
    a("s_mov_b32 s51, 0x7f000000")
    a(f"v_cmp_nlt_f32 vcc, v{OA+8}, s50")
    a("v_cmp_nlt_f32 s[56:57], v12, s51")
    a("v_cmp_u_f32 s[58:59], v13, v13")
    a("s_or_b64 vcc, vcc, s[56:57]")
    a("s_or_b64 vcc, vcc, s[58:59]")
    a("s_cmp_eq_u64 vcc, 0")
    a("s_cbranch_scc1 L_k2_fin")
    a("s_mov_b32 s53, 1")
    a(f"v_mov_b32 v{VKA}, v2")
    a("v_mov_b32 v12, 0xff800000")
    a("s_mov_b32 s54, 64")
    a.label("L_k2_maxloop")
    a(f"ds_read_b128 {v(KB[0],4)}, v{VKA}")
    a(f"v_add_u32 v{VKA}, 1024, v{VKA}")
    a("s_waitcnt lgkmcnt(0)")
    a(f"{MFMA} {v(S0,16)}, {v(KB[0],4)}, {v(QR,4)}, 0")
    a("s_nop 7\ns_nop 3")
    for i in range(0, 16, 2):
        a(f"v_max3_f32 v12, v12, v{S0+i}, v{S0+i+1}")
    a("s_sub_u32 s54, s54, 1")
    a("s_cmp_lg_u32 s54, 0")
    a("s_cbranch_scc1 L_k2_maxloop")
    xhalf(a, "v_max_f32", 12, 13, 14)
    a("s_branch L_k2_main")
    a.label("L_k2_fin")
    a("s_lshr_b32 s50, s31, 1")
    a("s_lshl_b32 s50, s50, 10")
    a("s_and_b32 s51, s31, 1")
    a("s_lshl_b32 s55, s51, 3")
    a("s_add_u32 s50, s50, s55")
    a("s_add_u32 s50, s50, 131072")
    a("v_add_u32 v13, s50, v2")
    for t in range(8):
        a(f"ds_read_b64 {v(KP+2*t,2)}, v13 offset:{t*4096}")
    a(f"v_rcp_f32 v12, v{OA+8}")
    a("s_nop 0")
    for i in range(8):
        a(f"v_mul_f32 v{OA+i}, v{OA+i}, v12")
    for i in range(4):
        a(f"v_cvt_pk_bf16_f32 v{S0+i}, v{OA+2*i}, v{OA+2*i+1}")
    a("s_lshl_b32 s55, s32, 6")
    a("s_add_u32 s55, s55, s28")
    a("s_lshl_b32 s55, s55, 10")
    a(f"s_add_u32 s55, s55, {OC}")
    a(f"buffer_store_dwordx4 {v(S0,4)}, v2, s[20:23], s55 offen")
    a("s_waitcnt lgkmcnt(0)")
    for t in range(4):
        a(f"v_add_f32 v{KP+2*t}, v{KP+2*t}, v{KP+8+2*t}")
        a(f"v_add_f32 v{KP+2*t+1}, v{KP+2*t+1}, v{KP+8+2*t+1}")
    for t in range(2):
        a(f"v_add_f32 v{KP+2*t}, v{KP+2*t}, v{KP+4+2*t}")
        a(f"v_add_f32 v{KP+2*t+1}, v{KP+2*t+1}, v{KP+4+2*t+1}")
    a(f"v_add_f32 v{KP}, v{KP}, v{KP+2}")
    a(f"v_add_f32 v{KP+1}, v{KP+1}, v{KP+3}")
    a(f"v_cvt_pk_bf16_f32 v{KP}, v{KP}, v{KP+1}")
    a("s_barrier")
    a("s_lshr_b32 s50, s31, 2")
    a("s_lshl_b32 s50, s50, 10")
    a("s_and_b32 s51, s31, 3")
    a("s_lshl_b32 s51, s51, 2")
    a("s_add_u32 s50, s50, s51")
    a("v_add_u32 v13, s50, v2")
    a(f"ds_write_b32 v13, v{KP}")
    a("v_mov_b32 v14, 0")
    for i in range(4):
        a(f"v_dot2c_f32_bf16 v14, v{120+i}, v{124+i}")
    a("s_nop 2")
    a("v_add_f32_dpp v14, v14, v14 quad_perm:[1,0,3,2] row_mask:0xf bank_mask:0xf")
    a("s_nop 1")
    a("v_add_f32_dpp v14, v14, v14 quad_perm:[2,3,0,1] row_mask:0xf bank_mask:0xf")
    a("s_nop 1")
    a("v_add_f32_dpp v14, v14, v14 row_half_mirror row_mask:0xf bank_mask:0xf")
    a("s_nop 1")
    a("v_add_f32_dpp v14, v14, v14 row_mirror row_mask:0xf bank_mask:0xf")
    a("v_mov_b32 v15, v14")
    a("v_mov_b32 v12, v14")
    a("s_nop 1")
    a("v_permlane16_swap_b32 v15, v12")
    a("v_add_f32 v14, v15, v12")
    xhalf(a, "v_add_f32", 14, 15, 12)
    a("v_mul_f32 v14, s48, v14")
    a("v_exp_f32 v14, -v14")
    a("s_nop 0")
    a("v_add_f32 v14, 1.0, v14")
    a("v_rcp_f32 v14, v14")
    a("s_lshl_b32 s50, s52, 2")
    a(f"s_add_u32 s50, s50, {GG}")
    a("v_mov_b32 v15, 0")
    a("s_mov_b64 exec, 1")
    a("buffer_store_dword v14, v15, s[20:23], s50 offen")
    a("s_mov_b64 exec, -1")
    a("s_waitcnt lgkmcnt(0)")
    a("s_barrier")
    a(f"ds_read_b128 {v(KB[0],4)}, v2")
    a(f"ds_read_b128 {v(KB[1],4)}, v2 offset:1024")
    a("s_waitcnt lgkmcnt(0)")
    a(f"{MFMA} {v(OA,16)}, {v(KB[0],4)}, {v(PQR,4)}, 0")
    a(f"{MFMA} {v(OA,16)}, {v(KB[1],4)}, {v(PQR+4,4)}, {v(OA,16)}")
    a("s_nop 7\ns_nop 3")
    a(f"v_add_f32 v12, 0x358637bd, v{OA+8}")
    a("v_rcp_f32 v12, v12")
    a("s_nop 0")
    for i in range(8):
        a(f"v_mul_f32 v{OA+i}, v{OA+i}, v12")
    for i in range(4):
        a(f"v_cvt_pk_bf16_f32 v{S1+i}, v{OA+2*i}, v{OA+2*i+1}")
    a(f"s_add_u32 s55, s55, {32*1024}")
    a(f"buffer_store_dwordx4 {v(S1,4)}, v2, s[20:23], s55 offen")
    a.label("L_k2_end")
    a("s_endpgm")

def k3(a):
    head(a, "oproj_kernel")
    a("s_cmp_ge_u32 s2, 256")
    a("s_cbranch_scc1 L_k3_end")
    a("s_load_dwordx2 s[36:37], s[0:1], 16")
    a("s_load_dwordx2 s[38:39], s[0:1], 48")
    a("s_load_dwordx2 s[40:41], s[0:1], 64")
    a("s_load_dwordx2 s[44:45], s[0:1], 80")
    a("v_and_b32 v1, 63, v0")
    a("v_lshrrev_b32 v2, 6, v0")
    a("s_and_b32 s28, s2, 7")
    a("s_lshr_b32 s29, s2, 3")
    a("v_readfirstlane_b32 s31, v2")
    a("v_lshlrev_b32 v2, 4, v1")
    a("v_lshrrev_b32 v11, 3, v1")
    a("v_and_b32 v12, 7, v1")
    a("v_lshrrev_b32 v13, 1, v11")
    a("v_lshrrev_b32 v14, 2, v12")
    a("v_xor_b32 v13, v13, v14")
    a("v_and_b32 v13, 1, v13")
    a("v_lshlrev_b32 v14, 10, v11")
    a("v_lshl_add_u32 v14, v13, 6, v14")
    a("v_and_b32 v13, 3, v12")
    a("v_lshl_add_u32 v14, v13, 4, v14")
    a("s_and_b32 s32, s31, 1")
    a("s_bfe_u32 s33, s31, 0x10001")
    a("s_cmp_ge_u32 s31, 4")
    a("s_cselect_b64 vcc, -1, 0")
    a("s_nop 0")
    a("v_cndmask_b32 v3, v2, v14, vcc")
    a("s_lshl_b32 s50, s29, 1")
    a("s_add_u32 s50, s50, s32")
    a("s_lshl_b32 s50, s50, 6")
    a("s_lshl_b32 s51, s33, 5")
    a("s_add_u32 s50, s50, s51")
    a("s_lshl_b32 s50, s50, 10")
    a(f"s_add_u32 s50, s50, {OC}")
    a("s_lshl_b32 s51, s32, 15")
    a("s_lshl_b32 s52, s28, 7")
    a("s_add_u32 s51, s51, s52")
    a("s_cmp_ge_u32 s31, 4")
    a("s_cselect_b32 s50, s51, s50")
    a("s_mov_b32 s51, 4096")
    a("s_cselect_b32 s51, 65536, s51")
    a("s_cselect_b32 s52, 7168, 0")
    a("s_lshl_b32 s53, s31, 12")
    a("s_lshr_b32 s34, s31, 2")
    a("s_bfe_u32 s35, s31, 0x10001")
    a("s_lshl_b32 s54, s34, 1")
    a("s_add_u32 s54, s54, s32")
    a("s_lshl_b32 s54, s54, 12")
    a("v_add_u32 v4, s54, v2")
    a("v_add_u32 v5, 65536, v4")
    a("v_bfe_u32 v11, v1, 2, 2")
    a("v_lshrrev_b32 v12, 5, v1")
    a("v_lshl_add_u32 v13, v12, 2, v11")
    a("v_lshlrev_b32 v13, 7, v13")
    a("v_lshrrev_b32 v11, 1, v11")
    a("v_xor_b32 v11, s35, v11")
    a("v_lshl_add_u32 v13, v11, 6, v13")
    a("v_and_b32 v11, 1, v1")
    a("v_lshl_add_u32 v13, v11, 5, v13")
    a("v_bfe_u32 v11, v1, 4, 1")
    a("v_lshl_add_u32 v13, v11, 4, v13")
    a("v_bfe_u32 v11, v1, 1, 1")
    a("v_lshl_add_u32 v13, v11, 3, v13")
    a("s_lshl_b32 s54, s34, 13")
    a("s_add_u32 s54, s54, 16384")
    a("v_add_u32 v6, s54, v13")
    a("v_add_u32 v7, 65536, v6")
    a("s_waitcnt lgkmcnt(0)")
    srd(a, 20, 44, WS_BYTES)
    srd(a, 24, 40, 0x200000)
    a("s_cmp_eq_u32 s33, 0")
    a("s_cselect_b32 s8, s36, s38")
    a("s_cselect_b32 s9, s37, s39")
    a("s_cmp_ge_u32 s31, 4")
    a("s_cselect_b32 s8, s8, s44")
    a("s_cselect_b32 s9, s9, s45")
    a(f"s_mov_b32 s10, {hex(WS_BYTES)}")
    a(f"s_cselect_b32 s10, 0x80000, s10")
    a("s_mov_b32 s11, 0x20000")
    a("v_and_b32 v11, 31, v1")
    a("s_lshl_b32 s55, s29, 1")
    a("s_add_u32 s55, s55, s32")
    a("s_lshl_b32 s55, s55, 5")
    a("v_add_u32 v8, s55, v11")
    a("v_lshlrev_b32 v9, 2, v8")
    a(f"s_mov_b32 s56, {GG}")
    a("buffer_load_dword v10, v9, s[20:23], s56 offen")
    def dma(c):
        st = c & 3
        a(f"s_add_u32 m0, s53, {st*32768}")
        a(f"s_mul_i32 s56, s51, {c}")
        a("s_add_u32 s56, s56, s50")
        for i in range(4):
            a(f"buffer_load_dwordx4 v3, s[8:11], s56 offen offset:{i*1024} lds")
            if i < 3:
                a("s_add_u32 s56, s56, s52")
    for c in range(4):
        dma(c)
    AC = 16
    for i in range(16):
        a(f"v_mov_b32 v{AC+i}, 0")
    def reads(c, ks, b):
        st = c & 3
        a(f"ds_read_b128 {v(32+4*b,4)}, v{4 if st<2 else 5} offset:{(st&1)*32768 + ks*1024}")
        for rd in range(2):
            a(f"ds_read_b64_tr_b16 {v(40+4*b+2*rd,2)}, v{6 if st<2 else 7} offset:{(st&1)*32768 + ks*2048 + rd*1024}")
    a("s_waitcnt vmcnt(12)")
    a("s_barrier")
    reads(0, 0, 0)
    step = 0
    for c in range(8):
        for ks in range(4):
            b = step & 1
            if ks < 3:
                reads(c, ks+1, b ^ 1)
                a("s_waitcnt lgkmcnt(3)")
            elif c < 7:
                rem = min(7, c+3) - (c+1)
                a(f"s_waitcnt vmcnt({4*rem}) lgkmcnt(0)")
                a("s_barrier")
                reads(c+1, 0, b ^ 1)
                if c + 4 <= 7:
                    dma(c+4)
            else:
                a("s_waitcnt lgkmcnt(0)")
            a(f"{MFMA} {v(AC,16)}, {v(40+4*b,4)}, {v(32+4*b,4)}, {v(AC,16)}")
            step += 1
    a("s_barrier")
    a("s_and_b32 s54, s31, 3")
    a("s_lshl_b32 s54, s54, 12")
    a("v_add_u32 v4, s54, v2")
    a("v_sub_f32 v11, 1.0, v10")
    a("s_nop 4")
    a("s_cmp_eq_u32 s34, 0")
    a("s_cbranch_scc1 L_k3_a")
    for i in range(16):
        a(f"v_mul_f32 v{AC+i}, v{AC+i}, v11")
    for q in range(4):
        a(f"ds_write_b128 v4, {v(AC+4*q,4)} offset:{q*1024}")
    a("s_waitcnt lgkmcnt(0)")
    a("s_barrier")
    a("s_endpgm")
    a.label("L_k3_a")
    a("s_barrier")
    for q in range(4):
        a(f"ds_read_b128 {v(32+4*q,4)}, v4 offset:{q*1024}")
    a("v_lshlrev_b32 v8, 10, v8")
    a("v_lshl_add_u32 v8, v12, 5, v8")
    a("s_lshl_b32 s54, s28, 7")
    a("s_lshl_b32 s55, s35, 6")
    a("s_add_u32 s54, s54, s55")
    a("s_waitcnt lgkmcnt(0)")
    for i in range(16):
        a(f"v_fma_f32 v{AC+i}, v{AC+i}, v10, v{32+i}")
    for i in range(8):
        a(f"v_cvt_pk_bf16_f32 v{32+i}, v{AC+2*i}, v{AC+2*i+1}")
    a(f"buffer_store_dwordx4 {v(32,4)}, v8, s[24:27], s54 offen")
    a(f"buffer_store_dwordx4 {v(36,4)}, v8, s[24:27], s54 offen offset:16")
    a.label("L_k3_end")
    a("s_endpgm")

def desc(name, nv, ns=64):
    return f""".p2align 6
.amdhsa_kernel {name}
  .amdhsa_next_free_vgpr {nv}
  .amdhsa_next_free_sgpr {ns}
  .amdhsa_accum_offset {(nv+3)//4*4}
  .amdhsa_group_segment_fixed_size 0
  .amdhsa_kernarg_size 88
  .amdhsa_user_sgpr_count 2
  .amdhsa_user_sgpr_kernarg_segment_ptr 1
  .amdhsa_system_sgpr_workgroup_id_x 1
.end_amdhsa_kernel
"""

def main(out):
    hdr = open("cdna_kernels/" + NAME + ".s.ref").read().split("\n")
    hdr = [l for l in hdr if l.startswith(";") and "@launch" not in l]
    txt = "\n".join(hdr) + "\n"
    txt += "; @launch kernel=qkv_kernel grid=(256,1,1) block=(512,1,1) lds=163840\n"
    txt += "; @launch kernel=attn_kernel grid=(256,1,1) block=(512,1,1) lds=163840\n"
    txt += "; @launch kernel=oproj_kernel grid=(256,1,1) block=(512,1,1) lds=131072\n"
    txt += '.amdgcn_target "amdgcn-amd-amdhsa--gfx950"\n.text\n'
    for fn, nm in ((k1, "k1"), (k2, "k2"), (k3, "k3")):
        a = Asm(); fn(a)
        for p in check_hazards(a.lines, nm):
            print("HAZARD", p)
        txt += a.text()
    txt += '.section .rodata,"a"\n'
    txt += desc("qkv_kernel", 128) + desc("attn_kernel", 160) + desc("oproj_kernel", 64)
    open(out, "w").write(txt)

if __name__ == "__main__":
    main(sys.argv[1] if len(sys.argv) > 1 else "cdna_kernels/" + NAME + ".s")
```

```python
import sys, re
sys.path.insert(0, 'dev')
from sizes import sizes
def add(src_path, out_path, mode='A', stride=128):
    src = open(src_path).read().split('\n')
    _, idx, ins = sizes(src_path)
    total = ins[-1][0] + ins[-1][1]
    k = [i for i, l in enumerate(src) if l.strip().startswith('s_load_dwordx2 s[84:85]')][0]
    sh = {64: 6, 128: 7}[stride]
    lim = total - 64
    ins_l = ['    s_getpc_b64 s[86:87]']
    if mode == 'A':
        ins_l += [f'    v_lshlrev_b32 v62, {sh}, v0', f'    v_min_u32 v62, {lim}, v62', '    global_load_dword v63, v62, s[86:87]']
    elif mode == 'B':
        n = (total // stride + 4) // 4
        ins_l += ['    s_lshr_b32 s35, s2, 3', '    s_and_b32 s35, s35, 3', f'    s_mul_i32 s35, s35, {n*stride}',
                  f'    v_min_u32 v62, {n-1}, v0', f'    v_lshlrev_b32 v62, {sh}, v62', '    v_add_u32 v62, s35, v62', f'    v_min_u32 v62, {lim}, v62',
                  '    global_load_dword v63, v62, s[86:87]']
    elif mode == 'C':
        ins_l += ['    v_and_b32 v61, 63, v0', '    v_lshrrev_b32 v62, 6, v0', '    v_lshl_add_u32 v62, v61, 3, v62',
                  f'    v_lshlrev_b32 v62, {sh}, v62', f'    v_min_u32 v62, {lim}, v62', '    global_load_dword v63, v62, s[86:87]']
    elif mode[0] == 'D':
        G = int(mode[1:])
        n = -(-(total // stride + 1) // (8 * G))
        ins_l += ['    s_lshr_b32 s35, s2, 3', f'    s_and_b32 s35, s35, {G-1}', f'    s_mul_i32 s35, s35, {8*n*stride}',
                  '    v_and_b32 v61, 63, v0', '    v_lshrrev_b32 v62, 6, v0', f'    v_min_u32 v61, {n-1}, v61', f'    v_mad_u32_u24 v62, v62, {n}, v61',
                  f'    v_lshlrev_b32 v62, {sh}, v62', '    v_add_u32 v62, s35, v62', f'    v_min_u32 v62, {lim}, v62',
                  '    global_load_dword v63, v62, s[86:87]']
    elif mode[0] == 'E':
        G = int(mode[1:])
        n = -(-(total // stride + 1) // G)
        ins_l += ['    s_lshr_b32 s35, s2, 3', f'    s_and_b32 s35, s35, {G-1}', f'    s_mul_i32 s35, s35, {n*stride}',
                  f'    v_min_u32 v62, {n-1}, v0', f'    v_lshlrev_b32 v62, {sh}, v62', '    v_add_u32 v62, s35, v62', f'    v_min_u32 v62, {lim}, v62',
                  '    global_load_dword v63, v62, s[86:87]']
    src[k+1:k+1] = ins_l
    open(out_path, 'w').write('\n'.join(src))
if __name__ == '__main__':
    add(sys.argv[1], sys.argv[2], sys.argv[3] if len(sys.argv) > 3 else 'A', int(sys.argv[4]) if len(sys.argv) > 4 else 128)
```
